```python
import torch

def _softmax(x, axis=-1):
    return torch.softmax(x, dim=axis)

def _gelu(x):
    return torch.nn.functional.gelu(x, approximate='tanh')

def _silu(x):
    return torch.nn.functional.silu(x)

def _sigmoid(x):
    return torch.sigmoid(x)

def _layernorm(x, axis=-1, eps=1e-05):
    m = x.mean(dim=axis, keepdim=True)
    v = x.var(dim=axis, keepdim=True, unbiased=False)
    return (x - m) / torch.sqrt(v + eps)

def _scatter_add(tgt, idx, src, axis=0):
    return tgt.clone().index_add_(axis, idx, src)

def _segment_sum(src, seg, n):
    out = torch.zeros((n,) + src.shape[1:], dtype=src.dtype)
    return out.index_add_(0, seg, src)

def _pad(x, pw):
    flat = tuple((v for pair in reversed(pw) for v in pair))
    return torch.nn.functional.pad(x, flat)
kernel_name = 'adaLN_cond__sliding_block__dense_activation_relu__prompt'

def setup_inputs():

    _w = lambda a: (lambda t: t.to(torch.bfloat16) if t.is_floating_point() else t)(torch.as_tensor(a))

    def _A_setup():
        B, S, D = (1, 2048, 448)
        return {'x': _w((lambda *s: torch.randn(*s, dtype=torch.bfloat16) * 0.05)(B, S, D)), 'wqkv': _w((lambda *s: torch.randn(*s, dtype=torch.bfloat16) * 0.05)(D, 3 * D)), 'wo': _w((lambda *s: torch.randn(*s, dtype=torch.bfloat16) * 0.05)(D, D))}
    _A_in = _A_setup()

    def _B_setup():
        B, S, D, Dff = (1, 2048, 448, 1792)
        return {'x': _w((lambda *s: torch.randn(*s, dtype=torch.bfloat16) * 0.05)(B, S, D)), 'w1': _w((lambda *s: torch.randn(*s, dtype=torch.bfloat16) * 0.05)(D, Dff)), 'w2': _w((lambda *s: torch.randn(*s, dtype=torch.bfloat16) * 0.05)(Dff, D))}
    _B_in = _B_setup()
    return {'A_x': _A_in['x'], 'A_wqkv': _A_in['wqkv'], 'A_wo': _A_in['wo'], 'B_x': _B_in['x'], 'B_w1': _B_in['w1'], 'B_w2': _B_in['w2'], 'c': _w((lambda *s: torch.randn(*s, dtype=torch.bfloat16) * 0.1)(1, 448) * 8.0), 'w_mod': _w((lambda *s: torch.randn(*s, dtype=torch.bfloat16) * 0.1)(448, 6 * 448) * 448 ** (-0.5) * 8.0)}

def reference(A_x, A_wqkv, A_wo, B_x, B_w1, B_w2, c, w_mod):

    def _A_ref(x, wqkv, wo):
        B, S, D = x.shape
        H = 16
        Dh = D // H
        W = 256
        qkv = (lambda x, *d: x.permute(*d))((x @ wqkv).reshape(B, S, 3, H, Dh), 2, 0, 3, 1, 4)
        q, k, v = (qkv[0], qkv[1], qkv[2])
        scores = torch.einsum('bhqd,bhkd->bhqk', q, k) * Dh ** (-0.5)
        idx = torch.arange(S)
        mask = (idx[:, None] - idx[None, :] >= 0) & (idx[:, None] - idx[None, :] < W)
        scores = torch.where(mask[None, None], scores, -1000000000.0)
        p = _softmax(scores, axis=-1)
        o = torch.einsum('bhqk,bhkd->bhqd', p, v)
        return (lambda x, *d: x.permute(*d))(o, 0, 2, 1, 3).reshape(B, S, D) @ wo

    def _B_ref(x, w1, w2):
        h = torch.einsum('bsd,df->bsf', x, w1)
        zero = torch.zeros_like(h)
        h = torch.maximum(h, zero)
        return torch.einsum('bsf,fd->bsd', h, w2)
    x = A_x
    mod = (_silu(c) @ w_mod).reshape(c.shape[0], 6, 1, -1)
    sa, ca, ga, sb, cb, gb = (mod[:, 0].clone(), mod[:, 1].clone(), mod[:, 2].clone(), mod[:, 3].clone(), mod[:, 4].clone(), mod[:, 5].clone())
    h = _layernorm(x, axis=-1) * (1 + ca) + sa
    x = x + ga * _A_ref(h, A_wqkv, A_wo)
    h = _layernorm(x, axis=-1) * (1 + cb) + sb
    x = x + gb * _B_ref(h, B_w1, B_w2)
    return x
```

```python
import os
WS_MOD   = 0x0
WS_XHAT  = 0x4000
WS_WQKVF = 0x200000
WS_WOF   = 0x380000
WS_W1F   = 0x400000
WS_W2F   = 0x600000
WS_Q     = 0x800000
WS_K     = 0xA00000
WS_VT    = 0xC00000
WS_O     = 0xE00000
WS_X1    = 0x1000000
WS_H1    = 0x1200000

KA_X, KA_WQKV, KA_WO, KA_BX, KA_W1, KA_W2, KA_C, KA_WMOD, KA_OUT, KA_DBG, KA_WS = [8*i for i in range(11)]

class Asm:
    def __init__(self):
        self.lines = []
        self.uid = 0
    def __call__(self, s=""):
        for l in s.split("\n"):
            self.lines.append("    " + l.strip() if l.strip() and not l.strip().endswith(":") else l.strip())
    def label(self, base):
        self.uid += 1
        return f"L_{base}_{self.uid}"
    def text(self):
        return "\n".join(self.lines) + "\n"

def srd_from_ptr(a, d, p, nbytes, off=0):
    if off:
        a(f"s_add_u32 s{d}, s{p}, {off}")
        a(f"s_addc_u32 s{d+1}, s{p+1}, 0")
        a(f"s_and_b32 s{d+1}, s{d+1}, 0xffff")
    else:
        a(f"s_mov_b32 s{d}, s{p}")
        a(f"s_and_b32 s{d+1}, s{p+1}, 0xffff")
    a(f"s_mov_b32 s{d+2}, {nbytes}")
    a(f"s_mov_b32 s{d+3}, 0x00020000")

def kernel_begin(a, name):
    a(f".globl {name}")
    a(".p2align 8")
    a(f".type {name},@function")
    a(f"{name}:")

def kernel_desc(name, nvgpr, nsgpr=102, accum=None, nagpr=0):
    if accum is None:
        accum = (nvgpr + 3)//4*4
    if os.environ.get("STAMP", "0") == "1":
        accum = 256; nvgpr = 256
    nfv = accum + nagpr if nagpr else nvgpr
    return f""".p2align 6
.amdhsa_kernel {name}
  .amdhsa_next_free_vgpr {nfv}
  .amdhsa_next_free_sgpr {nsgpr}
  .amdhsa_accum_offset {accum}
  .amdhsa_group_segment_fixed_size 0
  .amdhsa_kernarg_size 88
  .amdhsa_user_sgpr_count 2
  .amdhsa_user_sgpr_kernarg_segment_ptr 1
  .amdhsa_system_sgpr_workgroup_id_x 1
.end_amdhsa_kernel
"""

def magic_div(d, maxn):
    for S in range(8, 32):
        M = -(-(1 << S) // d)
        if M >= (1 << 24) or (maxn-1)*M >= (1 << 32):
            continue
        if all((n*M) >> S == n//d for n in range(maxn)):
            return M, S
    raise Exception("no magic")

import os
STAMP = os.environ.get("STAMP", "0") == "1"
WS_STAMP = 0x2000000
def stamp(a, kidx, which, sreg_ws=None):
    if not STAMP:
        return
    a("s_load_dwordx2 s[96:97], s[0:1], 80")
    a("s_memrealtime s[98:99]")
    a("s_waitcnt lgkmcnt(0)")
    a(f"s_add_u32 s96, s96, {WS_STAMP + kidx*1024*16*32 + which*8}")
    a("s_addc_u32 s97, s97, 0")
    a("s_mov_b64 s[94:95], exec")
    a("s_mov_b64 exec, 1")
    a("v_lshrrev_b32 v255, 6, v0")
    a("s_lshl_b32 s100, s2, 4")
    a("v_add_u32 v255, s100, v255")
    a("v_lshlrev_b32 v255, 5, v255")
    a("v_mov_b32 v252, s98")
    a("v_mov_b32 v253, s99")
    a("global_store_dwordx2 v255, v[252:253], s[96:97]")
    a("s_mov_b64 exec, s[94:95]")

def kend(a, kidx):
    if STAMP:
        a("s_waitcnt vmcnt(0) lgkmcnt(0)")
        stamp(a, kidx, 1)
    a("s_endpgm")
def kstart(a, kidx):
    stamp(a, kidx, 0)
import struct
def f32bits(x):
    return struct.unpack("<I", struct.pack("<f", x))[0]
```

```python
from common import *

N_MOD_WG = 84
N_LN_WG = 64
B_LN = N_MOD_WG
B_WQKV = B_LN + N_LN_WG
B_WO = B_WQKV + 42
B_W1 = B_WO + 13
B_W2 = B_W1 + 49
B_END = B_W2 + 49

def gen_prep(a, name, pbase, src_ptr, src_bytes, row_stride, NB, KS, nblocks, dst_off, dst_bytes, qkv):
    M, S = magic_div(NB, nblocks + 256)
    srd_from_ptr(a, 24, src_ptr, src_bytes)
    srd_from_ptr(a, 28, 20, dst_bytes, dst_off)
    a(f"s_sub_u32 s3, s2, {pbase}")
    a("s_lshl_b32 s3, s3, 8")
    a("v_add_u32 v1, s3, v0")
    a(f"v_cmp_gt_u32 vcc, {nblocks}, v1")
    a("s_and_saveexec_b64 s[32:33], vcc")
    lend = a.label("prep_end")
    a(f"s_cbranch_execz {lend}")
    a(f"v_mul_u32_u24 v2, {M}, v1")
    a(f"v_lshrrev_b32 v2, {S}, v2")
    a(f"v_mul_u32_u24 v3, {NB}, v2")
    a("v_sub_u32 v3, v1, v3")
    a(f"v_mul_u32_u24 v4, {8*row_stride}, v2")
    if qkv:
        a("v_lshrrev_b32 v5, 2, v3")
        a("v_and_b32 v6, 3, v3")
        a("v_mul_u32_u24 v5, 56, v5")
        a("v_lshl_add_u32 v5, v6, 4, v5")
        a("v_add_u32 v4, v4, v5")
    else:
        a("v_lshl_add_u32 v4, v3, 4, v4")
    for i in range(8):
        a(f"s_mov_b32 s34, {i*row_stride}")
        a(f"buffer_load_dwordx4 v[{8+4*i}:{11+4*i}], v4, s[24:27], s34 offen")
    a("v_lshrrev_b32 v5, 1, v3")
    a(f"v_mul_u32_u24 v5, {KS}, v5")
    a("v_lshrrev_b32 v7, 2, v2")
    a("v_add_u32 v5, v5, v7")
    a("v_lshlrev_b32 v5, 10, v5")
    a("v_and_b32 v7, 3, v2")
    a("v_lshl_add_u32 v5, v7, 8, v5")
    a("v_and_b32 v7, 1, v3")
    a("v_lshl_add_u32 v5, v7, 7, v5")
    a("s_mov_b32 s35, 0x05040100")
    a("s_mov_b32 s36, 0x07060302")
    a("s_waitcnt vmcnt(0)")
    if qkv:
        a("v_cmp_eq_u32 vcc, 3, v6")
        a("s_nop 1")
        for i in range(8):
            a(f"v_cndmask_b32 v{10+4*i}, v{10+4*i}, 0, s[106:107]" if False else f"v_cndmask_b32_e64 v{10+4*i}, v{10+4*i}, 0, vcc")
            a(f"v_cndmask_b32_e64 v{11+4*i}, v{11+4*i}, 0, vcc")
    for j in range(8):
        sel = "s35" if j % 2 == 0 else "s36"
        base = 40 + (j % 2) * 4
        for q in range(4):
            lo = 8 + 4*(2*q) + (j >> 1)
            hi = 8 + 4*(2*q+1) + (j >> 1)
            a(f"v_perm_b32 v{base+q}, v{hi}, v{lo}, {sel}")
        a(f"buffer_store_dwordx4 v[{base}:{base+3}], v5, s[28:31], 0 offen offset:{16*j}")
    a(f"{lend}:")
    kend(a, 0)

def gen_k1(a):
    kernel_begin(a, "k1_kernel")
    kstart(a, 0)
    a("s_load_dwordx16 s[4:19], s[0:1], 0")
    a("s_load_dwordx2 s[20:21], s[0:1], 80")
    a(f"s_cmp_ge_u32 s2, {B_END}")
    a("s_cbranch_scc1 L_k1_exit")
    a("s_waitcnt lgkmcnt(0)")
    a(f"s_cmp_lt_u32 s2, {B_LN}")
    a("s_cbranch_scc1 L_k1_mod")
    a(f"s_cmp_lt_u32 s2, {B_WQKV}")
    a("s_cbranch_scc1 L_k1_ln")
    a(f"s_cmp_lt_u32 s2, {B_WO}")
    a("s_cbranch_scc1 L_k1_wqkv")
    a(f"s_cmp_lt_u32 s2, {B_W1}")
    a("s_cbranch_scc1 L_k1_wo")
    a(f"s_cmp_lt_u32 s2, {B_W2}")
    a("s_cbranch_scc1 L_k1_w1")
    gen_prep(a, "w2", B_W2, 14, 1605632, 896, 56, 56, 224*56, WS_W2F, 1605632, False)
    a("L_k1_w1:")
    gen_prep(a, "w1", B_W1, 12, 1605632, 3584, 224, 14, 56*224, WS_W1F, 1605632, False)
    a("L_k1_wo:")
    gen_prep(a, "wo", B_WO, 8, 401408, 896, 56, 14, 56*56, WS_WOF, 401408, False)
    a("L_k1_wqkv:")
    gen_prep(a, "wqkv", B_WQKV, 6, 1204224, 2688, 192, 14, 56*192, WS_WQKVF, 1376256, True)

    a("L_k1_ln:")
    srd_from_ptr(a, 24, 4, 1835008)
    srd_from_ptr(a, 28, 20, 1835008, WS_XHAT)
    a(f"s_sub_u32 s3, s2, {B_LN}")
    a("s_lshl_b32 s3, s3, 5")
    a("v_lshrrev_b32 v1, 3, v0")
    a("v_add_u32 v1, s3, v1")
    a("v_mul_u32_u24 v1, 896, v1")
    a("v_and_b32 v2, 7, v0")
    a("v_lshl_add_u32 v1, v2, 4, v1")
    for j in range(7):
        a(f"buffer_load_dwordx4 v[{8+4*j}:{11+4*j}], v1, s[24:27], 0 offen offset:{128*j}")
    a("s_waitcnt vmcnt(0)")
    for j in range(28):
        a(f"v_lshlrev_b32 v{40+2*j}, 16, v{8+j}")
        a(f"v_and_b32 v{41+2*j}, 0xffff0000, v{8+j}")
    a("v_add_f32 v2, v40, v41")
    a("v_add_f32 v3, v42, v43")
    a("v_add_f32 v4, v44, v45")
    a("v_add_f32 v5, v46, v47")
    for j in range(8, 56, 4):
        for q in range(4):
            a(f"v_add_f32 v{2+q}, v{2+q}, v{40+j+q}")
    a("v_add_f32 v2, v2, v3")
    a("v_add_f32 v4, v4, v5")
    a("v_add_f32 v2, v2, v4")
    def red8(r):
        a("s_nop 1")
        a(f"v_add_f32_dpp v{r}, v{r}, v{r} quad_perm:[1,0,3,2] row_mask:0xf bank_mask:0xf")
        a("s_nop 1")
        a(f"v_add_f32_dpp v{r}, v{r}, v{r} quad_perm:[2,3,0,1] row_mask:0xf bank_mask:0xf")
        a("s_nop 1")
        a(f"v_add_f32_dpp v{r}, v{r}, v{r} row_half_mirror row_mask:0xf bank_mask:0xf")
    red8(2)
    a(f"v_mul_f32 v2, {1.0/448!r}, v2")
    for j in range(56):
        a(f"v_sub_f32 v{40+j}, v{40+j}, v2")
    a("v_mul_f32 v3, v40, v40")
    a("v_mul_f32 v4, v41, v41")
    a("v_mul_f32 v5, v42, v42")
    a("v_mul_f32 v6, v43, v43")
    for j in range(4, 56, 4):
        for q in range(4):
            a(f"v_fmac_f32 v{3+q}, v{40+j+q}, v{40+j+q}")
    a("v_add_f32 v3, v3, v4")
    a("v_add_f32 v5, v5, v6")
    a("v_add_f32 v3, v3, v5")
    red8(3)
    a("v_mov_b32 v4, 0x3727c5ac")
    a(f"v_fmac_f32 v4, {1.0/448!r}, v3")
    a("v_rsq_f32 v4, v4")
    a("s_nop 0")
    for j in range(56):
        a(f"v_mul_f32 v{40+j}, v{40+j}, v4")
    for j in range(28):
        a(f"v_cvt_pk_bf16_f32 v{8+j}, v{40+2*j}, v{41+2*j}")
    for j in range(7):
        a(f"buffer_store_dwordx4 v[{8+4*j}:{11+4*j}], v1, s[28:31], 0 offen offset:{128*j}")
    kend(a, 0)

    a("L_k1_mod:")
    srd_from_ptr(a, 24, 18, 2408448)
    srd_from_ptr(a, 28, 16, 896)
    srd_from_ptr(a, 32, 20, 10752, WS_MOD)
    a("v_and_b32 v1, 3, v0")
    a("v_lshrrev_b32 v2, 2, v0")
    a("v_mul_u32_u24 v3, 5376, v2")
    a("v_lshl_add_u32 v3, v1, 4, v3")
    a("s_lshl_b32 s3, s2, 6")
    a("v_add_u32 v3, s3, v3")
    a("v_lshlrev_b32 v4, 1, v2")
    for j in range(7):
        a(f"buffer_load_ushort v{36+j}, v4, s[28:31], 0 offen offset:{128*j}")
    for j in range(7):
        a(f"s_mov_b32 s36, {j*64*5376}")
        a(f"buffer_load_dwordx4 v[{8+4*j}:{11+4*j}], v3, s[24:27], s36 offen")
    a("s_waitcnt vmcnt(7)")
    for j in range(7):
        a(f"v_lshlrev_b32 v{36+j}, 16, v{36+j}")
        a(f"v_mul_f32 v{44+j}, 0xbfb8aa3b, v{36+j}")
    for j in range(7):
        a(f"v_exp_f32 v{44+j}, v{44+j}")
    a("s_nop 0")
    for j in range(7):
        a(f"v_add_f32 v{44+j}, 1.0, v{44+j}")
    for j in range(7):
        a(f"v_rcp_f32 v{44+j}, v{44+j}")
    a("s_nop 0")
    for j in range(7):
        a(f"v_mul_f32 v{36+j}, v{36+j}, v{44+j}")
    for j in range(7):
        a(f"v_cvt_pk_bf16_f32 v{36+j}, v{36+j}, v{36+j}")
    for j in range(7):
        a(f"v_lshlrev_b32 v{36+j}, 16, v{36+j}")
    a("s_waitcnt vmcnt(0)")
    for j in range(7):
        for d in range(4):
            a(f"v_lshlrev_b32 v5, 16, v{8+4*j+d}")
            a(f"v_and_b32 v6, 0xffff0000, v{8+4*j+d}")
            if j == 0:
                a(f"v_mul_f32 v{52+2*d}, v36, v5")
                a(f"v_mul_f32 v{53+2*d}, v36, v6")
            else:
                a(f"v_fmac_f32 v{52+2*d}, v{36+j}, v5")
                a(f"v_fmac_f32 v{53+2*d}, v{36+j}, v6")
    a("v_lshlrev_b32 v5, 7, v2")
    a("v_lshl_add_u32 v5, v1, 5, v5")
    a("ds_write_b128 v5, v[52:55]")
    a("ds_write_b128 v5, v[56:59] offset:16")
    a("s_waitcnt lgkmcnt(0)")
    a("s_barrier")
    a("v_cmp_gt_u32 vcc, 64, v0")
    a("s_and_saveexec_b64 s[36:37], vcc")
    a("s_cbranch_execz L_k1_exit")
    a("v_and_b32 v1, 31, v0")
    a("v_lshrrev_b32 v2, 5, v0")
    a("v_lshlrev_b32 v3, 2, v1")
    a("v_lshl_add_u32 v3, v2, 12, v3")
    for i in range(32):
        a(f"ds_read_b32 v{8+i}, v3 offset:{128*i}")
    a("s_waitcnt lgkmcnt(0)")
    for st in (16, 8, 4, 2, 1):
        for i in range(st):
            a(f"v_add_f32 v{8+i}, v{8+i}, v{8+i+st}")
    a("v_mov_b32 v9, v8")
    a("s_nop 1")
    a("v_permlane32_swap_b32 v8, v9")
    a("v_add_f32 v8, v8, v9")
    a("v_cvt_pk_bf16_f32 v8, v8, v8")
    a("v_lshlrev_b32 v8, 16, v8")
    a("v_lshlrev_b32 v3, 2, v1")
    a("s_lshl_b32 s3, s2, 7")
    a("v_add_u32 v3, s3, v3")
    a("v_cmp_gt_u32 vcc, 32, v0")
    a("s_and_saveexec_b64 s[36:37], vcc")
    a("buffer_store_dword v8, v3, s[32:35], 0 offen")
    a("L_k1_exit:")
    kend(a, 0)
    return ("k1_kernel", B_END, 256, 8192, kernel_desc("k1_kernel", 96))
```

```python
import sys, importlib
from common import *
import k1
mods = [k1.gen_k1]
for nm in ("k2", "k3", "k4", "k5", "k6"):
    try:
        m = importlib.import_module(nm)
        mods.append(getattr(m, "gen_" + nm))
    except ImportError:
        pass
nk = int(sys.argv[2]) if len(sys.argv) > 2 else len(mods)
mods = mods[:nk]
hdr = open('adaLN_cond__sliding_block__dense_activation_relu__prompt.s.ref').read().split('; Override')[0]
a = Asm()
infos = [g(a) for g in mods]
out = hdr
for (name, grid, block, lds, desc) in infos:
    out += f"; @launch kernel={name} grid=({grid},1,1) block=({block},1,1) lds={lds}\n"
out += '.amdgcn_target "amdgcn-amd-amdhsa--gfx950"\n.text\n'
out += a.text()
out += '.section .rodata,"a"\n'
for info in infos:
    out += info[4]
open(sys.argv[1], "w").write(out)
```

```python
import os
WS_MOD   = 0x0
WS_XHAT  = 0x4000
WS_WQKVF = 0x200000
WS_WOF   = 0x380000
WS_W1F   = 0x400000
WS_W2F   = 0x600000
WS_Q     = 0x800000
WS_K     = 0xA00000
WS_VT    = 0xC00000
WS_O     = 0xE00000
WS_X1    = 0x1000000
WS_H1    = 0x1200000

KA_X, KA_WQKV, KA_WO, KA_BX, KA_W1, KA_W2, KA_C, KA_WMOD, KA_OUT, KA_DBG, KA_WS = [8*i for i in range(11)]

class Asm:
    def __init__(self):
        self.lines = []
        self.uid = 0
    def __call__(self, s=""):
        for l in s.split("\n"):
            self.lines.append("    " + l.strip() if l.strip() and not l.strip().endswith(":") else l.strip())
    def label(self, base):
        self.uid += 1
        return f"L_{base}_{self.uid}"
    def text(self):
        return "\n".join(self.lines) + "\n"

def srd_from_ptr(a, d, p, nbytes, off=0):
    if off:
        a(f"s_add_u32 s{d}, s{p}, {off}")
        a(f"s_addc_u32 s{d+1}, s{p+1}, 0")
        a(f"s_and_b32 s{d+1}, s{d+1}, 0xffff")
    else:
        a(f"s_mov_b32 s{d}, s{p}")
        a(f"s_and_b32 s{d+1}, s{p+1}, 0xffff")
    a(f"s_mov_b32 s{d+2}, {nbytes}")
    a(f"s_mov_b32 s{d+3}, 0x00020000")

def kernel_begin(a, name):
    a(f".globl {name}")
    a(".p2align 8")
    a(f".type {name},@function")
    a(f"{name}:")

def kernel_desc(name, nvgpr, nsgpr=102, accum=None, nagpr=0):
    if accum is None:
        accum = (nvgpr + 3)//4*4
    if os.environ.get("STAMP", "0") == "1":
        accum += 4; nvgpr = accum
    nfv = accum + nagpr if nagpr else nvgpr
    return f""".p2align 6
.amdhsa_kernel {name}
  .amdhsa_next_free_vgpr {nfv}
  .amdhsa_next_free_sgpr {nsgpr}
  .amdhsa_accum_offset {accum}
  .amdhsa_group_segment_fixed_size 0
  .amdhsa_kernarg_size 88
  .amdhsa_user_sgpr_count 2
  .amdhsa_user_sgpr_kernarg_segment_ptr 1
  .amdhsa_system_sgpr_workgroup_id_x 1
.end_amdhsa_kernel
"""

def magic_div(d, maxn):
    for S in range(8, 32):
        M = -(-(1 << S) // d)
        if M >= (1 << 24) or (maxn-1)*M >= (1 << 32):
            continue
        if all((n*M) >> S == n//d for n in range(maxn)):
            return M, S
    raise Exception("no magic")

import os
STAMP = os.environ.get("STAMP", "0") == "1"
WS_STAMP = 0x2000000
NV = [252]
def set_nv(n):
    NV[0] = (n+3)//4*4
def stamp(a, kidx, which, sreg_ws=None):
    if not STAMP:
        return
    a("s_load_dwordx2 s[96:97], s[0:1], 80")
    a("s_memrealtime s[98:99]")
    a("s_waitcnt lgkmcnt(0)")
    a(f"s_add_u32 s96, s96, {WS_STAMP + kidx*1024*16*32 + which*8}")
    a("s_addc_u32 s97, s97, 0")
    a("s_mov_b64 s[94:95], exec")
    a("s_mov_b64 exec, 1")
    a(f"v_lshrrev_b32 v{NV[0]+3}, 6, v0")
    a("s_lshl_b32 s100, s2, 4")
    a(f"v_add_u32 v{NV[0]+3}, s100, v{NV[0]+3}")
    a(f"v_lshlrev_b32 v{NV[0]+3}, 5, v{NV[0]+3}")
    a(f"v_mov_b32 v{NV[0]}, s98")
    a(f"v_mov_b32 v{NV[0]+1}, s99")
    a(f"global_store_dwordx2 v{NV[0]+3}, v[{NV[0]}:{NV[0]+1}], s[96:97]")
    a("s_mov_b64 exec, s[94:95]")

def kend(a, kidx):
    if STAMP:
        a("s_waitcnt vmcnt(0) lgkmcnt(0)")
        stamp(a, kidx, 1)
    a("s_endpgm")
def kstart(a, kidx):
    stamp(a, kidx, 0)
import struct
def f32bits(x):
    return struct.unpack("<I", struct.pack("<f", x))[0]

class Sprinkle:
    def __init__(self, a, items, every):
        self.a = a; self.items = list(items); self.every = every; self.n = 0; self.hold = False
    def __call__(self, s):
        self.a(s)
        self.n += 1
        if s.startswith("s_nop") or "v_cmp" in s or s.startswith("s_waitcnt") or "readfirstlane" in s:
            return
        if self.n >= self.every and self.items:
            self.n = 0
            for l in self.items.pop(0):
                self.a(l)
    def flush(self):
        for it in self.items:
            for l in it:
                self.a(l)
        self.items = []
    def label(self, b):
        return self.a.label(b)
```

```python
from common import *

N_MOD_WG = 84
N_LN_WG = 64
B_LN = N_MOD_WG
B_WQKV = B_LN + N_LN_WG
B_END = B_WQKV + 42

def gen_prep(a, name, pbase, src_ptr, src_bytes, row_stride, NB, KS, nblocks, dst_off, dst_bytes, qkv, lgblk=8, kidx=0):
    M, S = magic_div(NB, nblocks + 512)
    srd_from_ptr(a, 24, src_ptr, src_bytes)
    srd_from_ptr(a, 28, 20, dst_bytes, dst_off)
    a(f"s_sub_u32 s3, s2, {pbase}")
    a(f"s_lshl_b32 s3, s3, {lgblk}")
    a("v_add_u32 v1, s3, v0")
    a(f"v_cmp_gt_u32 vcc, {nblocks}, v1")
    a("s_and_saveexec_b64 s[32:33], vcc")
    lend = a.label("prep_end")
    a(f"s_cbranch_execz {lend}")
    a(f"v_mul_u32_u24 v2, {M}, v1")
    a(f"v_lshrrev_b32 v2, {S}, v2")
    a(f"v_mul_u32_u24 v3, {NB}, v2")
    a("v_sub_u32 v3, v1, v3")
    a(f"v_mul_u32_u24 v4, {8*row_stride}, v2")
    if qkv:
        a("v_lshrrev_b32 v5, 2, v3")
        a("v_and_b32 v6, 3, v3")
        a("v_mul_u32_u24 v5, 56, v5")
        a("v_lshl_add_u32 v5, v6, 4, v5")
        a("v_add_u32 v4, v4, v5")
    else:
        a("v_lshl_add_u32 v4, v3, 4, v4")
    for i in range(8):
        a(f"s_mov_b32 s34, {i*row_stride}")
        a(f"buffer_load_dwordx4 v[{8+4*i}:{11+4*i}], v4, s[24:27], s34 offen")
    a("v_lshrrev_b32 v5, 1, v3")
    a(f"v_mul_u32_u24 v5, {KS}, v5")
    a("v_lshrrev_b32 v7, 2, v2")
    a("v_add_u32 v5, v5, v7")
    a("v_lshlrev_b32 v5, 10, v5")
    a("v_and_b32 v7, 3, v2")
    a("v_lshl_add_u32 v5, v7, 8, v5")
    a("v_and_b32 v7, 1, v3")
    a("v_lshl_add_u32 v5, v7, 7, v5")
    a("s_mov_b32 s35, 0x05040100")
    a("s_mov_b32 s36, 0x07060302")
    a("s_waitcnt vmcnt(0)")
    if qkv:
        a("v_cmp_eq_u32 vcc, 3, v6")
        a("s_nop 1")
        for i in range(8):
            a(f"v_cndmask_b32 v{10+4*i}, v{10+4*i}, 0, s[106:107]" if False else f"v_cndmask_b32_e64 v{10+4*i}, v{10+4*i}, 0, vcc")
            a(f"v_cndmask_b32_e64 v{11+4*i}, v{11+4*i}, 0, vcc")
    for j in range(8):
        sel = "s35" if j % 2 == 0 else "s36"
        base = 40 + (j % 2) * 4
        for q in range(4):
            lo = 8 + 4*(2*q) + (j >> 1)
            hi = 8 + 4*(2*q+1) + (j >> 1)
            a(f"v_perm_b32 v{base+q}, v{hi}, v{lo}, {sel}")
        a(f"buffer_store_dwordx4 v[{base}:{base+3}], v5, s[28:31], 0 offen offset:{16*j}")
    a(f"{lend}:")
    kend(a, kidx)

def gen_k1(a):
    kernel_begin(a, "k1_kernel")
    set_nv(96)
    kstart(a, 0)
    a("s_load_dwordx16 s[4:19], s[0:1], 0")
    a("s_load_dwordx2 s[20:21], s[0:1], 80")
    a(f"s_cmp_ge_u32 s2, {B_END}")
    a("s_cbranch_scc1 L_k1_exit")
    a("s_waitcnt lgkmcnt(0)")
    a(f"s_cmp_lt_u32 s2, {B_LN}")
    a("s_cbranch_scc1 L_k1_mod")
    a(f"s_cmp_lt_u32 s2, {B_WQKV}")
    a("s_cbranch_scc1 L_k1_ln")
    a("L_k1_wqkv:")
    gen_prep(a, "wqkv", B_WQKV, 6, 1204224, 2688, 192, 14, 56*192, WS_WQKVF, 1376256, True)

    a("L_k1_ln:")
    srd_from_ptr(a, 24, 4, 1835008)
    srd_from_ptr(a, 28, 20, 1835008, WS_XHAT)
    a(f"s_sub_u32 s3, s2, {B_LN}")
    a("s_lshl_b32 s3, s3, 5")
    a("v_lshrrev_b32 v1, 3, v0")
    a("v_add_u32 v1, s3, v1")
    a("v_mul_u32_u24 v1, 896, v1")
    a("v_and_b32 v2, 7, v0")
    a("v_lshl_add_u32 v1, v2, 4, v1")
    for j in range(7):
        a(f"buffer_load_dwordx4 v[{8+4*j}:{11+4*j}], v1, s[24:27], 0 offen offset:{128*j}")
    a("s_waitcnt vmcnt(0)")
    for j in range(28):
        a(f"v_lshlrev_b32 v{40+2*j}, 16, v{8+j}")
        a(f"v_and_b32 v{41+2*j}, 0xffff0000, v{8+j}")
    a("v_add_f32 v2, v40, v41")
    a("v_add_f32 v3, v42, v43")
    a("v_add_f32 v4, v44, v45")
    a("v_add_f32 v5, v46, v47")
    for j in range(8, 56, 4):
        for q in range(4):
            a(f"v_add_f32 v{2+q}, v{2+q}, v{40+j+q}")
    a("v_add_f32 v2, v2, v3")
    a("v_add_f32 v4, v4, v5")
    a("v_add_f32 v2, v2, v4")
    def red8(r):
        a("s_nop 1")
        a(f"v_add_f32_dpp v{r}, v{r}, v{r} quad_perm:[1,0,3,2] row_mask:0xf bank_mask:0xf")
        a("s_nop 1")
        a(f"v_add_f32_dpp v{r}, v{r}, v{r} quad_perm:[2,3,0,1] row_mask:0xf bank_mask:0xf")
        a("s_nop 1")
        a(f"v_add_f32_dpp v{r}, v{r}, v{r} row_half_mirror row_mask:0xf bank_mask:0xf")
    red8(2)
    a(f"v_mul_f32 v2, {1.0/448!r}, v2")
    for j in range(56):
        a(f"v_sub_f32 v{40+j}, v{40+j}, v2")
    a("v_mul_f32 v3, v40, v40")
    a("v_mul_f32 v4, v41, v41")
    a("v_mul_f32 v5, v42, v42")
    a("v_mul_f32 v6, v43, v43")
    for j in range(4, 56, 4):
        for q in range(4):
            a(f"v_fmac_f32 v{3+q}, v{40+j+q}, v{40+j+q}")
    a("v_add_f32 v3, v3, v4")
    a("v_add_f32 v5, v5, v6")
    a("v_add_f32 v3, v3, v5")
    red8(3)
    a("v_mov_b32 v4, 0x3727c5ac")
    a(f"v_fmac_f32 v4, {1.0/448!r}, v3")
    a("v_rsq_f32 v4, v4")
    a("s_nop 0")
    for j in range(56):
        a(f"v_mul_f32 v{40+j}, v{40+j}, v4")
    for j in range(28):
        a(f"v_cvt_pk_bf16_f32 v{8+j}, v{40+2*j}, v{41+2*j}")
    for j in range(7):
        a(f"buffer_store_dwordx4 v[{8+4*j}:{11+4*j}], v1, s[28:31], 0 offen offset:{128*j}")
    kend(a, 0)

    a("L_k1_mod:")
    srd_from_ptr(a, 24, 18, 2408448)
    srd_from_ptr(a, 28, 16, 896)
    srd_from_ptr(a, 32, 20, 10752, WS_MOD)
    a("v_and_b32 v1, 3, v0")
    a("v_lshrrev_b32 v2, 2, v0")
    a("v_mul_u32_u24 v3, 5376, v2")
    a("v_lshl_add_u32 v3, v1, 4, v3")
    a("s_lshl_b32 s3, s2, 6")
    a("v_add_u32 v3, s3, v3")
    a("v_lshlrev_b32 v4, 1, v2")
    for j in range(7):
        a(f"buffer_load_ushort v{36+j}, v4, s[28:31], 0 offen offset:{128*j}")
    for j in range(7):
        a(f"s_mov_b32 s36, {j*64*5376}")
        a(f"buffer_load_dwordx4 v[{8+4*j}:{11+4*j}], v3, s[24:27], s36 offen")
    a("s_waitcnt vmcnt(7)")
    for j in range(7):
        a(f"v_lshlrev_b32 v{36+j}, 16, v{36+j}")
        a(f"v_mul_f32 v{44+j}, 0xbfb8aa3b, v{36+j}")
    for j in range(7):
        a(f"v_exp_f32 v{44+j}, v{44+j}")
    a("s_nop 0")
    for j in range(7):
        a(f"v_add_f32 v{44+j}, 1.0, v{44+j}")
    for j in range(7):
        a(f"v_rcp_f32 v{44+j}, v{44+j}")
    a("s_nop 0")
    for j in range(7):
        a(f"v_mul_f32 v{36+j}, v{36+j}, v{44+j}")
    for j in range(7):
        a(f"v_cvt_pk_bf16_f32 v{36+j}, v{36+j}, v{36+j}")
    for j in range(7):
        a(f"v_lshlrev_b32 v{36+j}, 16, v{36+j}")
    a("s_waitcnt vmcnt(0)")
    for j in range(7):
        for d in range(4):
            a(f"v_lshlrev_b32 v5, 16, v{8+4*j+d}")
            a(f"v_and_b32 v6, 0xffff0000, v{8+4*j+d}")
            if j == 0:
                a(f"v_mul_f32 v{52+2*d}, v36, v5")
                a(f"v_mul_f32 v{53+2*d}, v36, v6")
            else:
                a(f"v_fmac_f32 v{52+2*d}, v{36+j}, v5")
                a(f"v_fmac_f32 v{53+2*d}, v{36+j}, v6")
    a("v_lshlrev_b32 v5, 7, v2")
    a("v_lshl_add_u32 v5, v1, 5, v5")
    a("ds_write_b128 v5, v[52:55]")
    a("ds_write_b128 v5, v[56:59] offset:16")
    a("s_waitcnt lgkmcnt(0)")
    a("s_barrier")
    a("v_cmp_gt_u32 vcc, 64, v0")
    a("s_and_saveexec_b64 s[36:37], vcc")
    a("s_cbranch_execz L_k1_exit")
    a("v_and_b32 v1, 31, v0")
    a("v_lshrrev_b32 v2, 5, v0")
    a("v_lshlrev_b32 v3, 2, v1")
    a("v_lshl_add_u32 v3, v2, 12, v3")
    for i in range(32):
        a(f"ds_read_b32 v{8+i}, v3 offset:{128*i}")
    a("s_waitcnt lgkmcnt(0)")
    for st in (16, 8, 4, 2, 1):
        for i in range(st):
            a(f"v_add_f32 v{8+i}, v{8+i}, v{8+i+st}")
    a("v_mov_b32 v9, v8")
    a("s_nop 1")
    a("v_permlane32_swap_b32 v8, v9")
    a("v_add_f32 v8, v8, v9")
    a("v_cvt_pk_bf16_f32 v8, v8, v8")
    a("v_lshlrev_b32 v8, 16, v8")
    a("v_lshlrev_b32 v3, 2, v1")
    a("s_lshl_b32 s3, s2, 7")
    a("v_add_u32 v3, s3, v3")
    a("v_cmp_gt_u32 vcc, 32, v0")
    a("s_and_saveexec_b64 s[36:37], vcc")
    a("buffer_store_dword v8, v3, s[32:35], 0 offen")
    a("L_k1_exit:")
    kend(a, 0)
    return ("k1_kernel", B_END, 256, 8192, kernel_desc("k1_kernel", 96))
```

```python
from common import *
SC = os.environ.get("SC", " sc1")

N_MOD_WG = 84
N_LN_WG = 64
B_LN = N_MOD_WG
B_WQKV = B_LN + N_LN_WG
B_END = B_WQKV + 42

def gen_prep(a, name, pbase, src_ptr, src_bytes, row_stride, NB, KS, nblocks, dst_off, dst_bytes, qkv, lgblk=8, kidx=0, rowpad=False):
    NCG = NB // 8
    nwaves = nblocks // 64
    wpb = 1 << (lgblk - 6)
    M, S = magic_div(NCG, nwaves + 16)
    srd_from_ptr(a, 24, src_ptr, src_bytes)
    srd_from_ptr(a, 28, 20, dst_bytes, dst_off)
    a("v_lshrrev_b32 v1, 6, v0")
    a("s_nop 0")
    a("v_readfirstlane_b32 s37, v1")
    a(f"s_sub_u32 s3, s2, {pbase}")
    a(f"s_lshl_b32 s3, s3, {lgblk-6}")
    a("s_add_u32 s3, s3, s37")
    lend = a.label("prep_end")
    a(f"s_cmp_ge_u32 s3, {nwaves}")
    a(f"s_cbranch_scc1 {lend}")
    a(f"s_mul_i32 s38, s3, {M}")
    a(f"s_lshr_b32 s38, s38, {S}")
    a(f"s_mul_i32 s39, s38, {NCG}")
    a("s_sub_u32 s39, s3, s39")
    a("v_and_b32 v1, 63, v0")
    a("v_lshrrev_b32 v2, 3, v1")
    a("v_and_b32 v3, 7, v1")
    a("s_lshl_b32 s40, s38, 3")
    a("v_add_u32 v4, s40, v2")
    if rowpad:
        a("v_lshrrev_b32 v5, 2, v4")
        a("v_and_b32 v6, 3, v4")
        a("v_mul_u32_u24 v5, 28, v5")
        a("v_lshl_add_u32 v4, v6, 3, v5")
        a(f"v_mul_u32_u24 v4, {row_stride}, v4")
    else:
        a(f"v_mul_u32_u24 v4, {8*row_stride}, v4")
    a("s_lshl_b32 s40, s39, 3")
    a("v_add_u32 v7, s40, v3")
    if qkv:
        a("v_lshrrev_b32 v5, 2, v7")
        a("v_and_b32 v6, 3, v7")
        a("v_mul_u32_u24 v5, 56, v5")
        a("v_lshl_add_u32 v5, v6, 4, v5")
        a("v_add_u32 v4, v4, v5")
    else:
        a("v_lshl_add_u32 v4, v7, 4, v4")
    for i in range(8):
        a(f"s_mov_b32 s34, {i*row_stride}")
        a(f"buffer_load_dwordx4 v[{8+4*i}:{11+4*i}], v4, s[24:27], s34 offen")
    a("v_lshrrev_b32 v5, 2, v2")
    a("v_lshlrev_b32 v5, 12, v5")
    a("v_lshrrev_b32 v7, 1, v3")
    a("v_lshl_add_u32 v5, v7, 10, v5")
    a("v_and_b32 v7, 3, v2")
    a("v_lshl_add_u32 v5, v7, 8, v5")
    a("v_and_b32 v7, 1, v3")
    a("v_lshl_add_u32 v5, v7, 7, v5")
    a("s_lshl_b32 s40, s37, 13")
    a("v_add_u32 v5, s40, v5")
    a("v_lshlrev_b32 v7, 4, v1")
    a("v_add_u32 v48, s40, v7")
    a("s_mov_b32 s35, 0x05040100")
    a("s_mov_b32 s36, 0x07060302")
    a("s_lshl_b32 s40, s39, 2")
    a(f"s_mul_i32 s40, s40, {KS}")
    a("s_lshl_b32 s41, s38, 1")
    a("s_add_u32 s40, s40, s41")
    a("s_lshl_b32 s40, s40, 10")
    a("s_waitcnt vmcnt(0)")
    if qkv:
        a("v_cmp_eq_u32 vcc, 3, v6")
        a("s_nop 1")
        for i in range(8):
            a(f"v_cndmask_b32_e64 v{10+4*i}, v{10+4*i}, 0, vcc")
            a(f"v_cndmask_b32_e64 v{11+4*i}, v{11+4*i}, 0, vcc")
    if rowpad:
        a("v_cmp_eq_u32 vcc, 3, v6")
        a("s_nop 1")
        for i in range(4, 8):
            for q in range(4):
                a(f"v_cndmask_b32_e64 v{8+4*i+q}, v{8+4*i+q}, 0, vcc")
    for j in range(8):
        sel = "s35" if j % 2 == 0 else "s36"
        base = 40 + (j % 2) * 4
        for q in range(4):
            lo = 8 + 4*(2*q) + (j >> 1)
            hi = 8 + 4*(2*q+1) + (j >> 1)
            a(f"v_perm_b32 v{base+q}, v{hi}, v{lo}, {sel}")
        a(f"ds_write_b128 v5, v[{base}:{base+3}] offset:{16*j}")
    a("s_waitcnt lgkmcnt(0)")
    for f in range(8):
        a(f"ds_read_b128 v[{8+4*f}:{11+4*f}], v48 offset:{1024*f}")
    for f in range(8):
        a(f"s_add_u32 s41, s40, {((f&3)*KS + (f>>2))*1024}")
        a(f"s_waitcnt lgkmcnt({7-f})")
        a(f"buffer_store_dwordx4 v[{8+4*f}:{11+4*f}], v7, s[28:31], s41 offen" + SC)
    a(f"{lend}:")
    kend(a, kidx)

def gen_k1(a):
    kernel_begin(a, "k1_kernel")
    set_nv(96)
    kstart(a, 0)
    a("s_load_dwordx16 s[4:19], s[0:1], 0")
    a("s_load_dwordx2 s[20:21], s[0:1], 80")
    a(f"s_cmp_ge_u32 s2, {B_END}")
    a("s_cbranch_scc1 L_k1_exit")
    a("s_waitcnt lgkmcnt(0)")
    a(f"s_cmp_lt_u32 s2, {B_LN}")
    a("s_cbranch_scc1 L_k1_mod")
    a(f"s_cmp_lt_u32 s2, {B_WQKV}")
    a("s_cbranch_scc1 L_k1_ln")
    a("L_k1_wqkv:")
    gen_prep(a, "wqkv", B_WQKV, 6, 1204224, 2688, 192, 14, 56*192, WS_WQKVF, 1376256, True)

    a("L_k1_ln:")
    srd_from_ptr(a, 24, 4, 1835008)
    srd_from_ptr(a, 28, 20, 1835008, WS_XHAT)
    a(f"s_sub_u32 s3, s2, {B_LN}")
    a("s_lshl_b32 s3, s3, 5")
    a("v_lshrrev_b32 v1, 3, v0")
    a("v_add_u32 v1, s3, v1")
    a("v_mul_u32_u24 v1, 896, v1")
    a("v_and_b32 v2, 7, v0")
    a("v_lshl_add_u32 v1, v2, 4, v1")
    for j in range(7):
        a(f"buffer_load_dwordx4 v[{8+4*j}:{11+4*j}], v1, s[24:27], 0 offen offset:{128*j}")
    a("s_waitcnt vmcnt(0)")
    for j in range(28):
        a(f"v_lshlrev_b32 v{40+2*j}, 16, v{8+j}")
        a(f"v_and_b32 v{41+2*j}, 0xffff0000, v{8+j}")
    a("v_add_f32 v2, v40, v41")
    a("v_add_f32 v3, v42, v43")
    a("v_add_f32 v4, v44, v45")
    a("v_add_f32 v5, v46, v47")
    for j in range(8, 56, 4):
        for q in range(4):
            a(f"v_add_f32 v{2+q}, v{2+q}, v{40+j+q}")
    a("v_add_f32 v2, v2, v3")
    a("v_add_f32 v4, v4, v5")
    a("v_add_f32 v2, v2, v4")
    def red8(r):
        a("s_nop 1")
        a(f"v_add_f32_dpp v{r}, v{r}, v{r} quad_perm:[1,0,3,2] row_mask:0xf bank_mask:0xf")
        a("s_nop 1")
        a(f"v_add_f32_dpp v{r}, v{r}, v{r} quad_perm:[2,3,0,1] row_mask:0xf bank_mask:0xf")
        a("s_nop 1")
        a(f"v_add_f32_dpp v{r}, v{r}, v{r} row_half_mirror row_mask:0xf bank_mask:0xf")
    red8(2)
    a(f"v_mul_f32 v2, {1.0/448!r}, v2")
    for j in range(56):
        a(f"v_sub_f32 v{40+j}, v{40+j}, v2")
    a("v_mul_f32 v3, v40, v40")
    a("v_mul_f32 v4, v41, v41")
    a("v_mul_f32 v5, v42, v42")
    a("v_mul_f32 v6, v43, v43")
    for j in range(4, 56, 4):
        for q in range(4):
            a(f"v_fmac_f32 v{3+q}, v{40+j+q}, v{40+j+q}")
    a("v_add_f32 v3, v3, v4")
    a("v_add_f32 v5, v5, v6")
    a("v_add_f32 v3, v3, v5")
    red8(3)
    a("v_mov_b32 v4, 0x3727c5ac")
    a(f"v_fmac_f32 v4, {1.0/448!r}, v3")
    a("v_rsq_f32 v4, v4")
    a("s_nop 0")
    for j in range(56):
        a(f"v_mul_f32 v{40+j}, v{40+j}, v4")
    for j in range(28):
        a(f"v_cvt_pk_bf16_f32 v{8+j}, v{40+2*j}, v{41+2*j}")
    for j in range(7):
        a(f"buffer_store_dwordx4 v[{8+4*j}:{11+4*j}], v1, s[28:31], 0 offen offset:{128*j}" + SC)
    kend(a, 0)

    a("L_k1_mod:")
    srd_from_ptr(a, 24, 18, 2408448)
    srd_from_ptr(a, 28, 16, 896)
    srd_from_ptr(a, 32, 20, 10752, WS_MOD)
    a("v_and_b32 v1, 3, v0")
    a("v_lshrrev_b32 v2, 2, v0")
    a("v_mul_u32_u24 v3, 5376, v2")
    a("v_lshl_add_u32 v3, v1, 4, v3")
    a("s_lshl_b32 s3, s2, 6")
    a("v_add_u32 v3, s3, v3")
    a("v_lshlrev_b32 v4, 1, v2")
    for j in range(7):
        a(f"buffer_load_ushort v{36+j}, v4, s[28:31], 0 offen offset:{128*j}")
    for j in range(7):
        a(f"s_mov_b32 s36, {j*64*5376}")
        a(f"buffer_load_dwordx4 v[{8+4*j}:{11+4*j}], v3, s[24:27], s36 offen")
    a("s_waitcnt vmcnt(7)")
    for j in range(7):
        a(f"v_lshlrev_b32 v{36+j}, 16, v{36+j}")
        a(f"v_mul_f32 v{44+j}, 0xbfb8aa3b, v{36+j}")
    for j in range(7):
        a(f"v_exp_f32 v{44+j}, v{44+j}")
    a("s_nop 0")
    for j in range(7):
        a(f"v_add_f32 v{44+j}, 1.0, v{44+j}")
    for j in range(7):
        a(f"v_rcp_f32 v{44+j}, v{44+j}")
    a("s_nop 0")
    for j in range(7):
        a(f"v_mul_f32 v{36+j}, v{36+j}, v{44+j}")
    for j in range(7):
        a(f"v_cvt_pk_bf16_f32 v{36+j}, v{36+j}, v{36+j}")
    for j in range(7):
        a(f"v_lshlrev_b32 v{36+j}, 16, v{36+j}")
    a("s_waitcnt vmcnt(0)")
    for j in range(7):
        for d in range(4):
            a(f"v_lshlrev_b32 v5, 16, v{8+4*j+d}")
            a(f"v_and_b32 v6, 0xffff0000, v{8+4*j+d}")
            if j == 0:
                a(f"v_mul_f32 v{52+2*d}, v36, v5")
                a(f"v_mul_f32 v{53+2*d}, v36, v6")
            else:
                a(f"v_fmac_f32 v{52+2*d}, v{36+j}, v5")
                a(f"v_fmac_f32 v{53+2*d}, v{36+j}, v6")
    a("v_lshlrev_b32 v5, 7, v2")
    a("v_lshl_add_u32 v5, v1, 5, v5")
    a("ds_write_b128 v5, v[52:55]")
    a("ds_write_b128 v5, v[56:59] offset:16")
    a("s_waitcnt lgkmcnt(0)")
    a("s_barrier")
    a("v_cmp_gt_u32 vcc, 64, v0")
    a("s_and_saveexec_b64 s[36:37], vcc")
    a("s_cbranch_execz L_k1_exit")
    a("v_and_b32 v1, 31, v0")
    a("v_lshrrev_b32 v2, 5, v0")
    a("v_lshlrev_b32 v3, 2, v1")
    a("v_lshl_add_u32 v3, v2, 12, v3")
    for i in range(32):
        a(f"ds_read_b32 v{8+i}, v3 offset:{128*i}")
    a("s_waitcnt lgkmcnt(0)")
    for st in (16, 8, 4, 2, 1):
        for i in range(st):
            a(f"v_add_f32 v{8+i}, v{8+i}, v{8+i+st}")
    a("v_mov_b32 v9, v8")
    a("s_nop 1")
    a("v_permlane32_swap_b32 v8, v9")
    a("v_add_f32 v8, v8, v9")
    a("v_cvt_pk_bf16_f32 v8, v8, v8")
    a("v_lshlrev_b32 v8, 16, v8")
    a("v_lshlrev_b32 v3, 2, v1")
    a("s_lshl_b32 s3, s2, 7")
    a("v_add_u32 v3, s3, v3")
    a("v_cmp_gt_u32 vcc, 32, v0")
    a("s_and_saveexec_b64 s[36:37], vcc")
    a("buffer_store_dword v8, v3, s[32:35], 0 offen")
    a("L_k1_exit:")
    kend(a, 0)
    return ("k1_kernel", B_END, 256, 32768, kernel_desc("k1_kernel", 96))
```
